```python
import torch

def _softmax(x, axis=-1):
    return torch.softmax(x, dim=axis)
def _gelu(x):
    return torch.nn.functional.gelu(x, approximate="tanh")
def _silu(x):
    return torch.nn.functional.silu(x)
def _sigmoid(x):
    return torch.sigmoid(x)
def _layernorm(x, axis=-1, eps=1e-5):
    m = x.mean(dim=axis, keepdim=True)
    v = x.var(dim=axis, keepdim=True, unbiased=False)
    return (x - m) / torch.sqrt(v + eps)
def _scatter_add(tgt, idx, src, axis=0):
    return tgt.clone().index_add_(axis, idx, src)
def _segment_sum(src, seg, n):
    out = torch.zeros((n,) + src.shape[1:], dtype=src.dtype)
    return out.index_add_(0, seg, src)
def _pad(x, pw):
    flat = tuple(v for pair in reversed(pw) for v in pair)
    return torch.nn.functional.pad(x, flat)

kernel_name = 'standalone__window_attn_swin__vision'

def setup_inputs():

    _w = (lambda a: (lambda t: t.to(torch.bfloat16) if t.is_floating_point() else t)(torch.as_tensor(a)))
    H = W = 512
    C = 96
    ws = 8
    nh = 4
    shift = ws // 2
    coords = torch.stack(torch.meshgrid(torch.arange(ws), torch.arange(ws), indexing='ij'), 0).reshape(2, -1)
    rel = coords[:, :, None] - coords[:, None, :]
    rel[0] += ws - 1
    rel[1] += ws - 1
    rel[0] *= 2 * ws - 1
    rp_idx = rel.sum(0).to(torch.int64)
    img_mask = torch.zeros((1, H, W, 1), dtype=float)
    cnt = 0
    for hs in (slice(0, H - ws), slice(H - ws, H - shift), slice(H - shift, H)):
        for vs in (slice(0, W - ws), slice(W - ws, W - shift), slice(W - shift, W)):
            img_mask[:, hs, vs, :] = cnt
            cnt += 1
    mw = img_mask.reshape(1, H // ws, ws, W // ws, ws, 1).permute(0, 1, 3, 2, 4, 5).reshape(-1, ws * ws)
    am = mw[:, :, None] - mw[:, None, :]
    attn_mask = torch.where(am != 0, -100.0, 0.0).to(float)
    return {
        "x": _w((lambda *s: torch.randn(*s, dtype=torch.bfloat16) * 1.6)(1, H, W, C)),
        "wqkv": _w((lambda *s: torch.randn(*s, dtype=torch.bfloat16) * 1.6)(C, 3 * C) * 0.02),
        "wo": _w((lambda *s: torch.randn(*s, dtype=torch.bfloat16) * 0.05)(C, C) * 0.02),
        "rpb": _w((lambda *s: torch.randn(*s, dtype=torch.bfloat16) * 0.4)((2 * ws - 1) * (2 * ws - 1), nh)),
        "rp_idx": _w(rp_idx),
        "attn_mask": _w(attn_mask),
    }

def reference(x, wqkv, wo, rpb, rp_idx, attn_mask):
    B, H, W, C = x.shape
    N = rp_idx.shape[0]
    ws = int(round(N ** 0.5))
    nh = rpb.shape[-1]
    hd = C // nh
    shift = ws // 2
    xs = torch.roll(x, (-shift, -shift), (1, 2))
    nWh = H // ws
    nWw = W // ws
    xw = (lambda x, *d: x.permute(*d))(xs.reshape(B, nWh, ws, nWw, ws, C), 0, 1, 3, 2, 4, 5).reshape(B * nWh * nWw, N, C)
    qkv = (lambda x, *d: x.permute(*d))(torch.einsum('wnc,cd->wnd', xw, wqkv).reshape(-1, N, 3, nh, hd), 2, 0, 3, 1, 4)
    q, k, v = qkv[0], qkv[1], qkv[2]
    attn = torch.einsum('whid,whjd->whij', q, k) * (hd ** -0.5)
    bias = (lambda x, *d: x.permute(*d))(rpb[rp_idx.reshape(-1)].reshape(N, N, nh), 2, 0, 1)
    attn = attn + bias[None, :, :, :]
    attn = (attn.reshape(B, nWh * nWw, nh, N, N) + attn_mask[None, :, None, :, :]).reshape(-1, nh, N, N)
    attn = _softmax(attn, axis=-1)
    out = (lambda x, *d: x.permute(*d))(torch.einsum('whij,whjd->whid', attn, v), 0, 2, 1, 3).reshape(-1, N, C)
    out = torch.einsum('wnc,cd->wnd', out, wo)
    out = (lambda x, *d: x.permute(*d))(out.reshape(B, nWh, nWw, ws, ws, C), 0, 1, 3, 2, 4, 5).reshape(B, H, W, C)
    return torch.roll(out, (shift, shift), (1, 2))
```

```python
import heapq

class I:
    __slots__=('text','defs','uses','kind','group','idx','prio','preds','succs','npred','t','slot','tag','bias','srcc','ab')
    def __init__(s,text,defs,uses,kind,group=None,tag='',bias=0,srcc=None,ab=None):
        s.text=text; s.defs=frozenset(defs); s.uses=frozenset(uses); s.kind=kind; s.group=group; s.tag=tag; s.bias=bias
        s.srcc=frozenset(srcc or ()); s.ab=frozenset(ab or ())
        s.preds=[]; s.succs=[]

COST={'mfma16':8,'mfma8':4,'valu':4,'trans':8,'perm':8,'ldsr':4,'ldsw':4,'vmld':4,'vmst':4,'salu':4,'wait':4,'nop':4}
MF=('mfma16','mfma8')
VAL=('valu','trans','perm')
LDS_LAT=140

def isreg(r): return isinstance(r,int)

def edge_req(p,c,dep,regs):
    vreg=any(isreg(r) for r in regs)
    if not vreg:
        return (COST[p.kind],0)
    if p.kind in MF:
        if dep in('RAW','WAW'):
            if c.kind in MF:
                if c.srcc and c.srcc==p.defs and not (c.ab & p.defs):
                    return (32,0)
                if c.ab & p.defs: return (56,12)
                if c.srcc & p.defs: return (48,10)
                return (32,0)
            return (56,12)
        else:
            if c.kind in VAL and (p.srcc & c.defs): return (36,7)
            return (COST[p.kind],0)
    if p.kind in VAL:
        if dep=='RAW' or dep=='WAW':
            if c.kind in MF and dep=='RAW': return (12,2)
            if c.kind=='perm' and dep=='RAW': return (12,2)
            if p.kind=='trans' and c.kind in('valu','perm') and dep=='RAW': return (12,1)
            if dep=='RAW': return (COST[p.kind]+2,0)
        return (COST[p.kind],0)
    if p.kind=='ldsr':
        if dep in('RAW','WAW'): return (LDS_LAT,0)
        return (4,0)
    if p.kind=='vmld':
        if dep in('RAW','WAW'): return (2000,0)
        return (4,0)
    if p.kind=='vmst' and dep=='WAR':
        return (12,2)
    return (COST[p.kind],0)

def build_dag(ins):
    lastw={}; readers={}
    for i,c in enumerate(ins):
        c.idx=i
        deps={}
        def add(p,dep,r):
            deps.setdefault((p.idx,dep),set()).add(r)
        for r in c.uses:
            if r in lastw: add(lastw[r],'RAW',r)
        for r in c.defs:
            if r in lastw: add(lastw[r],'WAW',r)
            for p in readers.get(r,()):
                if p is not c: add(p,'WAR',r)
        best={}
        for (pi,dep),regs in deps.items():
            lat,sl=edge_req(ins[pi],c,dep,regs)
            a=best.get(pi,(0,0)); best[pi]=(max(a[0],lat),max(a[1],sl))
        for pi,(lat,sl) in best.items():
            c.preds.append((ins[pi],lat,sl)); ins[pi].succs.append((c,lat,sl))
        for r in c.uses: readers.setdefault(r,[]).append(c)
        for r in c.defs:
            lastw[r]=c; readers[r]=[]
    prevg={}
    for c in ins:
        if c.group is not None:
            if c.group in prevg:
                p=prevg[c.group]
                c.preds.append((p,COST[p.kind],0)); p.succs.append((c,COST[p.kind],0))
            prevg[c.group]=c
    for c in reversed(ins):
        c.prio=COST[c.kind]+max([lat+s.prio for s,lat,sl in c.succs],default=0)+c.bias

def schedule(ins,verbose=False,mfma_look=4,max_lds=14):
    build_dag(ins)
    groups={}
    for c in ins:
        if c.group is not None: groups.setdefault(c.group,[]).append(c)
    for c in ins:
        c.npred=len(c.preds); c.t=None
    avail=[c for c in ins if c.npred==0]
    t=0; pipe=0; out=[]; active=None; ldsq=[]
    stall=0; port=0
    def rdy(c):
        rt=0; rs=True
        for p,lat,sl in c.preds:
            if p.t is None: return None,False
            rt=max(rt,p.t+lat)
            if len(out)-p.slot-1<sl: rs=False
        return rt,rs
    def group_ready(c):
        for m in groups[c.group]:
            for p,lat,sl in m.preds:
                if p.group==c.group: continue
                if p.t is None: return False
                if p.t+lat>t+8: return False
                if len(out)-p.slot-1<sl: return False
        return True
    while avail:
        ldsq=[x for x in ldsq if x>t]
        cands=[]
        for c in avail:
            if active is not None and c.group!=active: continue
            if active is None and c.group is not None and groups[c.group][0] is c and not group_ready(c):
                cands.append((c,10**9,False)); continue
            rt,rs=rdy(c)
            if c.kind in MF: rt=max(rt,pipe-mfma_look)
            if c.kind in('ldsr','ldsw') and len(ldsq)>=max_lds: rt=max(rt,min(ldsq))
            cands.append((c,rt,rs))
        ready=[x for x in cands if x[1]<=t and x[2]]
        if ready:
            def key(x):
                c=x[0]
                cls=0 if c.kind in MF else 1 if c.kind in('ldsr','vmld','vmst','ldsw','salu') else 2
                return (cls,-c.prio,c.idx)
            c=min(ready,key=key)[0]
        else:
            def key2(x): return (max(x[1],t),0 if x[2] else 1,-x[0].prio)
            x=min(cands,key=key2); c=x[0]
            if x[1]>=10**9:
                rt,rs=rdy(c); x=(c,rt,rs)
            if x[1]>t:
                stall+=x[1]-t; t=x[1]
        if c.kind in MF:
            if pipe>t: stall+=pipe-t; t=pipe
            pipe=t+32
        c.t=t; c.slot=len(out); out.append(c); avail.remove(c)
        if c.kind in('ldsr','ldsw'): ldsq.append(t+LDS_LAT)
        if c.kind in MF+VAL: port+=COST[c.kind]
        t+=COST[c.kind]
        if c.group is not None:
            active=None if groups[c.group][-1] is c else c.group
        for s,lat,sl in c.succs:
            s.npred-=1
            if s.npred==0: avail.append(s)
    if verbose:
        nm=sum(1 for c in out if c.kind in MF)
    assert len(out)==len(ins)
    return out

def add_waits(seq, vm_pending_init=None):
    out=[]; lq=[]; vq=list(vm_pending_init or [])
    for c in seq:
        touched=c.uses|c.defs
        ln=None; vn=None
        for k,d in enumerate(lq):
            if d & touched: ln=len(lq)-1-k
        for k,d in enumerate(vq):
            if d & touched: vn=len(vq)-1-k
        if ln is not None or vn is not None:
            parts=[]
            if vn is not None:
                vn=min(vn,63); parts.append(f'vmcnt({vn})'); vq=vq[len(vq)-vn:] if vn>0 else []
            if ln is not None:
                ln=min(ln,15); parts.append(f'lgkmcnt({ln})'); lq=lq[len(lq)-ln:] if ln>0 else []
            out.append(I('s_waitcnt '+' '.join(parts),[],[],'wait'))
        out.append(c)
        if c.kind=='ldsr': lq.append(frozenset(r for r in c.defs if isreg(r)))
        elif c.kind=='ldsw': lq.append(frozenset())
        elif c.kind=='vmld': vq.append(frozenset(r for r in c.defs if isreg(r)))
        elif c.kind=='vmst': vq.append(frozenset())
    return out, lq, vq

def add_nops(seq, prev=None):
    out=list(prev or []); n0=len(out); nn=0
    def states(x):
        if x.kind=='nop': return int(x.text.split()[1])+1
        return 1
    for c in seq:
        need=0; dist=0
        for p in reversed(out[-24:]):
            if dist>=13: break
            req=0
            raw={r for r in p.defs&c.uses if isreg(r)}; waw={r for r in p.defs&c.defs if isreg(r)}; war={r for r in p.uses&c.defs if isreg(r)}
            if raw: req=max(req,edge_req(p,c,'RAW',raw)[1])
            if waw: req=max(req,edge_req(p,c,'WAW',waw)[1])
            if war: req=max(req,edge_req(p,c,'WAR',war)[1])
            need=max(need,req-dist)
            dist+=states(p)
        if need>0:
            out.append(I(f's_nop {need-1}',[],[],'nop')); nn+=need
        out.append(c)
    return out[n0:], nn
```

```python
import sys, math, struct
import sched
from sched import I, schedule, add_waits, add_nops

NAME='standalone__window_attn_swin__vision'
def f2u(x): return struct.unpack('<I',struct.pack('<f',x))[0]
SC=24**-0.5
C_EXP=SC*math.log2(math.e)
INV_SC=24**0.5
MASKV=-100.0*INV_SC

TILE=6144
WO_BASE=10*TILE
TB=13*TILE
XB0=TB+2*15360
XBSZ=6656
LDS_TOTAL=XB0+8*XBSZ

class Cfg:
    ld_pol=''
    st_pol=''
    op_joint=False
    order='a'
    prio=None
    bdelay=False
    lds_lat=140
    look=4

vW,vWo,vBd,vBo,vLr=0,1,2,3,4
vLw=[5,6,7]; vG=[8,9,10]; vC=11
WF=[12,16,20]
def X(TI,s): return 24+24*TI+4*s
def QO(h,TI): return 72+24*(h>>1)+12*TI+6*(h&1)
def K(h,TJ): return 120+12*(h&1)+6*TJ
def V(h,TJ): return 144+16*(h&1)+8*TJ
SBUF=176; OACC=208; PACC=224

def R(a,n): return list(range(a,a+n))
def vr(a,n): return f'v[{a}:{a+n-1}]' if n>1 else f'v{a}'

class Prog:
    def __init__(s,cfg):
        s.ins=[]; s.wi=0; s.gid=0; s.cfg=cfg; s.wbufs=list(WF)
    def add(s,*a,**k):
        i=I(*a,**k); s.ins.append(i); return i
    def wfrag(s,addr_reg,imm,step,tag):
        w=s.wbufs[s.wi%len(s.wbufs)]; s.wi+=1
        s.add(f'ds_read_b64_tr_b16 {vr(w,2)}, v{addr_reg} offset:{imm}',R(w,2),[addr_reg],'ldsr',tag=tag)
        s.add(f'ds_read_b64_tr_b16 {vr(w+2,2)}, v{addr_reg} offset:{imm+step}',R(w+2,2),[addr_reg],'ldsr',tag=tag)
        return w
    def mfma(s,d,a,b,first,tag,n=4):
        op='v_mfma_f32_32x32x16_bf16' if n==4 else 'v_mfma_f32_32x32x8_bf16'
        c='0' if first else vr(d,16)
        uses=R(a,n)+R(b,n)+([] if first else R(d,16))
        s.add(f'{op} {vr(d,16)}, {vr(a,n)}, {vr(b,n)}, {c}',R(d,16),uses,'mfma16' if n==4 else 'mfma8',tag=tag,
              srcc=[] if first else R(d,16), ab=R(a,n)+R(b,n))
    def cvt(s,d,a,b,tag,group=None):
        s.add(f'v_cvt_pk_bf16_f32 v{d}, v{a}, v{b}',[d],[a,b],'valu',tag=tag,group=group)
    def transpose_in(s):
        for TI in range(2):
            for ii in range(6):
                i=6*TI+ii; m=i%3; jj=(i//3)&1
                s.add(f'ds_write_b128 v{vLw[m]}, {vr(24+4*i,4)} offset:{jj*3328}',['LB'],[vLw[m]]+R(24+4*i,4),'ldsw',tag='xt')
            for k in range(6):
                s.add(f'ds_read_b128 {vr(X(TI,k),4)}, v{vLr} offset:{32*k}',R(X(TI,k),4),[vLr,'LB'],'ldsr',tag='xt')
    def load_x(s,sbase):
        for i in range(12):
            s.add(f'buffer_load_dwordx4 {vr(24+4*i,4)}, v{vG[i%3]}, s[8:11], s{sbase+i//3} offen{s.cfg.ld_pol}',R(24+4*i,4),[vG[i%3]],'vmld',tag='ldx')
    def job_qk(s,tile,acc=PACC):
        P=tile//3; tt=tile%3; a=2*P; b=2*P+1
        m=[[('q',a,0),('q',a,1),('q',a,2),('k',a,0)],[('k',a,1),('k',a,2),('q',b,0),('q',b,1)],[('q',b,2),('k',b,0),('k',b,1),('k',b,2)]][tt]
        tag=f'T{tile}'
        for k in range(6):
            w=s.wfrag(vW,tile*TILE+k*1024,256,tag)
            for TI in range(2): s.mfma(acc+16*TI,w,X(TI,k),k==0,tag)
        for TI in range(2):
            for q in range(4):
                kind,h,o=m[q]
                d=(QO(h,TI) if kind=='q' else K(h,TI))+2*o
                s.cvt(d,acc+16*TI+4*q,acc+16*TI+4*q+1,tag); s.cvt(d+1,acc+16*TI+4*q+2,acc+16*TI+4*q+3,tag)
    def job_v(s,h,acc=PACC):
        tag=f'V{h}'
        for k in range(6):
            w=s.wfrag(vW,(6+h)*TILE+k*1024,256,tag)
            for TJ in range(2): s.mfma(acc+16*TJ,X(TJ,k),w,k==0,tag)
        for TJ in range(2):
            s.gid+=1; g=s.gid
            s.add('s_mov_b64 exec, s[40:41]',[],[],'salu',group=g,tag=tag)
            for x in range(8): s.cvt(V(h,TJ)+x,acc+16*TJ+2*x,acc+16*TJ+2*x+1,tag,group=g)
            s.add('s_mov_b64 exec, -1',[],[],'salu',group=g,tag=tag)
    def unit_s(s,h,TI,S):
        tag=f'S{h}{TI}'
        for TJ in (1,0):
            for q in range(4):
                ar=vBd if TI==TJ else vBo
                imm=h*3840+(4*(TI-TJ)-q+7)*128
                s.add(f'ds_read_b128 {vr(S+16*TJ+4*q,4)}, v{ar} offset:{imm}',R(S+16*TJ+4*q,4),[ar],'ldsr',tag=tag)
        for TJ in (1,0): s.mfma(S+16*TJ,K(h,TJ),QO(h,TI),False,tag)
        for TJ in (1,0): s.mfma(S+16*TJ,K(h,TJ)+4,QO(h,TI)+4,False,tag,n=2)
    def unit_sm(s,h,TI,S,t0,t1,nm,oacc=OACC):
        tag=f'U{h}{TI}'
        A=S; B=S+16
        def mx3(d,a,b,c): s.add(f'v_max3_f32 v{d}, v{a}, v{b}, v{c}',[d],[a,b,c],'valu',tag=tag)
        mx3(t1,B,B+1,B+2); mx3(t0,A,A+1,A+2)
        for k in range(6):
            mx3(t1,t1,B+3+2*k,B+4+2*k); mx3(t0,t0,A+3+2*k,A+4+2*k)
        mx3(t0,t0,A+15,B+15)
        s.add(f'v_max_f32 v{t0}, v{t0}, v{t1}',[t0],[t0,t1],'valu',tag=tag)
        s.add(f'v_mov_b32 v{t1}, v{t0}',[t1],[t0],'valu',tag=tag)
        s.add(f'v_permlane32_swap_b32 v{t0}, v{t1}',[t0,t1],[t0,t1],'perm',tag=tag)
        s.add(f'v_max_f32 v{t0}, v{t0}, v{t1}',[t0],[t0,t1],'valu',tag=tag)
        s.add(f'v_mul_f32 v{nm}, 0x{f2u(-C_EXP):08x}, v{t0}',[nm],[t0],'valu',tag=tag)
        for x in range(32):
            r=S+x
            s.add(f'v_fma_f32 v{r}, v{r}, v{vC}, v{nm}',[r],[r,vC,nm],'valu',tag=tag)
            s.add(f'v_exp_f32 v{r}, v{r}',[r],[r],'trans',tag=tag)
            if x%2==1: s.cvt(S+x//2,r-1,r,tag)
        for u in range(4):
            TJ=u//2
            s.mfma(oacc,V(h,TJ)+4*(u%2),S+4*u,u==0,tag)
        s.add(f'v_rcp_f32 v{oacc+12}, v{oacc+12}',[oacc+12],[oacc+12],'trans',tag=tag)
        for x in range(12):
            s.add(f'v_mul_f32 v{oacc+x}, v{oacc+x}, v{oacc+12}',[oacc+x],[oacc+x,oacc+12],'valu',tag=tag)
            if x%2==1: s.cvt(QO(h,TI)+x//2,oacc+x-1,oacc+x,tag)
    def ofrag(s,TI,k):
        return QO(0,TI)+4*k if k<3 else QO(2,TI)+4*(k-3)
    def y_out(s,TI,acc,T,tag):
        for x in range(8): s.cvt(acc+x,acc+2*x,acc+2*x+1,tag)
        s.add(f'ds_write_b128 v{vLr}, {vr(acc,4)} offset:{64*T}',['LB'],[vLr]+R(acc,4),'ldsw',tag=tag)
        s.add(f'ds_write_b128 v{vLr}, {vr(acc+4,4)} offset:{64*T+32}',['LB'],[vLr]+R(acc+4,4),'ldsw',tag=tag)
    def y_store(s,TI,rb,tag):
        for ii in range(6):
            m=ii%3; jj=ii//3
            s.add(f'ds_read_b128 {vr(rb+4*ii,4)}, v{vLw[m]} offset:{jj*3328}',R(rb+4*ii,4),[vLw[m],'LB'],'ldsr',tag=tag)
        for ii in range(6):
            m=ii%3; j=2*TI+ii//3
            s.add(f'buffer_store_dwordx4 {vr(rb+4*ii,4)}, v{vG[m]}, s[12:15], s{32+j} offen{s.cfg.st_pol}',[],[vG[m]]+R(rb+4*ii,4),'vmst',tag=tag)
    def op(s,TI,accs,rb):
        tag=f'OP{TI}'
        for T in range(3):
            acc=accs[T%len(accs)]
            for k in range(6):
                w=s.wfrag(vWo,T*TILE+k*1024,512,tag)
                s.mfma(acc,w,s.ofrag(TI,k),k==0,tag)
            s.y_out(TI,acc,T,tag)
        s.y_store(TI,rb,tag)

def body(cfg):
    p=Prog(cfg)
    p.transpose_in()
    tA=(OACC+13,OACC+14,OACC+15)
    p.job_qk(0); p.job_qk(1); p.job_v(0)
    p.unit_s(0,0,SBUF); p.unit_sm(0,0,SBUF,*tA)
    p.unit_s(0,1,SBUF); p.unit_sm(0,1,SBUF,*tA)
    p.job_qk(2); p.job_v(1)
    p.unit_s(1,0,SBUF); p.unit_sm(1,0,SBUF,*tA)
    p.unit_s(1,1,SBUF); p.unit_sm(1,1,SBUF,*tA)
    p.job_qk(3); p.job_qk(4); p.job_v(2); p.job_qk(5); p.job_v(3)
    p.load_x(36)
    p.unit_s(2,0,SBUF); p.unit_s(2,1,PACC)
    p.unit_sm(2,0,SBUF,12,13,14)
    p.unit_s(3,0,SBUF)
    p.unit_sm(2,1,PACC,16,17,18)
    p.unit_s(3,1,PACC)
    p.unit_sm(3,0,SBUF,12,13,14)
    p.unit_sm(3,1,PACC,16,17,18)
    p.wbufs=[20,12,SBUF+0,SBUF+4,SBUF+8,SBUF+12]; p.wi=0
    p.op(0,[SBUF+16],120)
    p.wbufs=[20,12,16,SBUF+0,SBUF+4,SBUF+8,SBUF+12]; p.wi=0
    p.op(1,[PACC+16,SBUF+16],120)
    return p.ins

def prologue(cfg):
    L=[]
    a=L.append
    a('s_cmp_ge_u32 s2, 256'); a('s_cbranch_scc1 L_end')
    a('s_load_dwordx4 s[44:47], s[0:1], 0'); a('s_load_dwordx4 s[48:51], s[0:1], 16'); a('s_load_dwordx2 s[52:53], s[0:1], 48')
    a('v_lshrrev_b32 v12, 6, v0'); a('v_and_b32 v13, 63, v0')
    a('v_readfirstlane_b32 s28, v12')
    a('v_lshrrev_b32 v19, 2, v13')
    a('v_and_b32 v20, 3, v13')
    a('v_mul_u32_u24 v21, 576, v19')
    a('v_lshlrev_b32 v22, 3, v20')
    for r,tb in ((14,(0,1,2,12)),(15,(13,14,3,4)),(16,(5,15,16,17)),(17,(24,25,26,26))):
        val=tb[0]|tb[1]<<8|tb[2]<<16|tb[3]<<24
        a(f's_mov_b32 s54, 0x{val:08x}'); a(f'v_bfe_u32 v{r}, s54, v22, 8'); a(f'v_lshl_add_u32 v{r}, v{r}, 4, v21')
    a('v_mul_u32_u24 v18, 192, v19'); a('v_lshl_add_u32 v18, v20, 4, v18')
    a('v_lshrrev_b32 v23, 1, v0')
    a('v_and_b32 v72, 1, v0')
    a('v_cmp_le_u32 vcc, 120, v23')
    a('v_mov_b32 v73, 0')
    a('v_mov_b32 v74, 120')
    a('v_cndmask_b32 v75, v73, v74, vcc')
    a('v_sub_u32 v75, v23, v75')
    a('v_lshrrev_b32 v76, 3, v75')
    a('v_and_b32 v75, 7, v75')
    a('v_mul_u32_u24 v76, 15, v76')
    a('v_add_u32 v76, v76, v75')
    a('v_mov_b32 v74, 4')
    a('v_cndmask_b32 v75, v74, v73, vcc')
    a('v_add_u32 v76, v76, v75')
    a('v_lshlrev_b32 v76, 3, v76')
    a('v_lshl_add_u32 v76, v72, 2, v76')
    a('v_mul_u32_u24 v77, 7680, v72')
    a('v_lshl_add_u32 v77, v23, 4, v77')
    a(f'v_add_u32 v77, {TB}, v77')
    a('s_waitcnt lgkmcnt(0)')
    for base,lo,sz in ((8,44,50331648),(12,52,50331648),(16,46,55296),(20,48,18432),(24,50,1800)):
        a(f's_mov_b32 s{base}, s{lo}'); a(f's_mov_b32 s{base+1}, s{lo+1}'); a(f's_mov_b32 s{base+2}, {sz}'); a(f's_mov_b32 s{base+3}, 0x00020000')
    for k in range(4): a(f'buffer_load_dword v{80+k}, v76, s[24:27], 0 offen offset:{8*k}')
    a('s_cmp_ge_u32 s28, 6'); a('s_cbranch_scc1 L_nodma')
    a('s_mul_i32 s55, s28, 9216'); a('s_mul_i32 s56, s28, 3072'); a('s_lshl_b32 s57, s28, 10')
    for t in range(13):
        if t<6: pat=14+t%3; so=96*(t//3); sb=55; srd='s[16:19]'
        elif t<10: pat=17; so=48*(t-6); sb=55; srd='s[16:19]'
        else: pat=18; so=64*(t-10); sb=56; srd='s[20:23]'
        a(f's_add_u32 m0, s57, {t*TILE}'); a(f's_add_u32 s58, s{sb}, {so}')
        a(f'buffer_load_dwordx4 v{pat}, {srd}, s58 offen lds')
    a('L_nodma:')
    a('s_lshl_b32 s29, s2, 3'); a('s_add_u32 s29, s29, s28'); a('s_lshr_b32 s30, s29, 6'); a('s_and_b32 s31, s29, 63')
    a('s_lshl_b32 s59, s30, 3'); a('s_add_u32 s59, s59, 4')
    for j in range(4):
        a(f's_add_u32 s60, s59, {2*j}'); a(f's_mul_i32 s{32+j}, s60, 98304')
        a(f's_add_u32 s60, s59, {2*j+256}'); a('s_and_b32 s60, s60, 511'); a(f's_mul_i32 s{36+j}, s60, 98304')
    a('s_lshl_b32 s61, s31, 3'); a('s_add_u32 s61, s61, 4')
    a(f's_mul_i32 s62, s28, {XBSZ}'); a(f's_add_u32 s62, s62, {XB0}')
    a('s_mov_b32 s63, 43691'); a('s_mov_b32 s64, 98304'); a('s_movk_i32 s65, 192')
    for m in range(3):
        a(f'v_add_u32 v84, {64*m}, v13')
        a('v_mul_u32_u24 v85, s63, v84'); a('v_lshrrev_b32 v85, 19, v85')
        a('v_add_u32 v86, v84, v85'); a(f'v_lshl_add_u32 v{vLw[m]}, v86, 4, s62')
        a('v_mul_u32_u24 v86, 12, v85'); a('v_sub_u32 v86, v84, v86')
        a('v_and_b32 v87, 7, v85'); a('v_add_u32 v87, s61, v87'); a('v_and_b32 v87, 511, v87')
        a('v_lshrrev_b32 v85, 3, v85')
        a('v_mul_u32_u24 v85, s64, v85'); a('v_mad_u32_u24 v85, v87, s65, v85'); a(f'v_lshl_add_u32 v{vG[m]}, v86, 4, v85')
    def xl():
        for i in range(12):
            a(f'buffer_load_dwordx4 {vr(24+4*i,4)}, v{vG[i%3]}, s[8:11], s{32+i//3} offen{cfg.ld_pol}')
    xl()
    a('v_and_b32 v84, 31, v13'); a('v_lshrrev_b32 v85, 5, v13')
    a('v_bfe_u32 v86, v13, 2, 2'); a('v_and_b32 v87, 3, v13'); a('v_bfe_u32 v88, v13, 4, 1')
    a('v_mul_u32_u24 v89, 208, v84'); a('v_lshl_add_u32 v89, v85, 4, v89'); a(f'v_add_u32 v{vLr}, s62, v89')
    a('v_mul_u32_u24 v89, 1920, v85'); a('v_lshl_add_u32 v89, v84, 4, v89'); a(f'v_add_u32 v89, {TB}, v89')
    a('v_bfe_u32 v90, v13, 2, 1'); a('v_xor_b32 v90, v90, v85'); a('v_mul_u32_u24 v90, 15360, v90')
    a('s_cmp_eq_u32 s31, 63'); a('s_cselect_b32 s60, -1, 0'); a('v_and_b32 v90, s60, v90')
    a(f'v_add_u32 v{vBd}, v89, v90'); a(f'v_mov_b32 v{vBo}, v{vBd}')
    a('v_lshlrev_b32 v89, 5, v88')
    a('v_lshl_add_u32 v90, v85, 2, v86'); a('v_lshl_add_u32 v90, v90, 6, v89')
    a('v_and_b32 v91, 1, v87'); a('v_lshl_add_u32 v90, v91, 4, v90'); a('v_lshrrev_b32 v91, 1, v87'); a('v_lshl_add_u32 v90, v91, 3, v90')
    a(f'v_add_u32 v{vWo}, {WO_BASE}, v90')
    a('v_lshl_add_u32 v90, v85, 3, v86'); a('v_lshl_add_u32 v90, v90, 6, v89'); a(f'v_lshl_add_u32 v{vW}, v87, 3, v90')
    a(f'v_mov_b32 v{vC}, 0x{f2u(C_EXP):08x}')
    for r in range(144,176): a(f'v_mov_b32 v{r}, 0x3f803f80')
    a('s_mov_b32 s40, 0x00ffffff'); a('s_mov_b32 s41, 0x00ffffff'); a('s_mov_b32 s42, 0')
    a(f'v_mov_b32 v92, 0x{f2u(INV_SC):08x}'); a(f'v_mov_b32 v93, 0x{f2u(MASKV):08x}')
    a('v_cmp_gt_u32 vcc, 240, v23')
    a('s_waitcnt vmcnt(12)' )
    for hh in range(2):
        for r in range(4):
            src=80+3-r; d=96+8*hh+r
            a(f'v_lshlrev_b32 v{d}, 16, v{src}' if hh==0 else f'v_and_b32 v{d}, 0xffff0000, v{src}')
            a(f'v_mul_f32 v{d}, v{d}, v92'); a(f'v_add_f32 v{d+4}, v{d}, v93')
    a('s_and_saveexec_b64 s[66:67], vcc')
    for hh in range(2):
        a(f'ds_write_b128 v77, {vr(96+8*hh,4)} offset:{3840*hh}'); a(f'ds_write_b128 v77, {vr(100+8*hh,4)} offset:{3840*hh+15360}')
    a('s_mov_b64 exec, -1')
    a('s_waitcnt lgkmcnt(0)'); a('s_barrier'); a('s_waitcnt vmcnt(0)')
    return L

def loop_tail():
    L=[]; a=L.append
    a('s_cmp_eq_u32 s42, 1'); a('s_cbranch_scc1 L_end')
    a('s_mov_b32 s42, 1')
    for j in range(4): a(f's_mov_b32 s{32+j}, s{36+j}'); a(f's_mov_b32 s{36+j}, 0x40000000')
    a('s_cmp_eq_u32 s30, 31'); a('s_cbranch_scc0 L_loop')
    a(f'v_mov_b32 v12, {TB+15360}'); a(f'v_cmp_gt_u32 vcc, v12, v{vBd}'); a('v_mov_b32 v13, 0'); a('v_mov_b32 v14, 15360')
    a('v_cndmask_b32 v13, v13, v14, vcc'); a(f'v_add_u32 v{vBo}, v{vBd}, v13')
    a('s_branch L_loop')
    return L

def generate(cfg,path):
    sched.LDS_LAT=cfg.lds_lat
    ins=body(cfg)
    seq=schedule(ins,verbose=True,mfma_look=cfg.look)
    init=[frozenset(R(24+4*i,4)) for i in range(12)]+[frozenset()]*12
    seq,lq,vq=add_waits(seq,init)
    kinds=[c.kind for c in seq if c.kind in('vmld','vmst')]
    assert kinds==['vmld']*12+['vmst']*12, kinds
    seq,nn=add_nops(seq)
    seq2,nn2=add_nops(seq[:30],prev=seq[-30:])
    assert nn2==0
    from collections import Counter
    print('; nops',nn,Counter(c.kind for c in seq))
    hdr=open('cdna_kernels/'+NAME+'.s.ref').read().split('\n')
    hdr=[l for l in hdr if l.startswith(';') and '@launch' not in l]
    o=hdr+[f'; @launch grid=(256,1,1) block=(512,1,1) lds={LDS_TOTAL}','.amdgcn_target "amdgcn-amd-amdhsa--gfx950"','.text',
       f'.globl {NAME}_kernel','.p2align 8',f'.type {NAME}_kernel,@function',f'{NAME}_kernel:']
    o+=['  '+l if not l.endswith(':') else l for l in prologue(cfg)]
    o+=['.p2align 3','L_loop:']
    o+=[f'  {c.text}'+(f'  ; {c.tag}' if c.tag else '') for c in seq]
    o+=['  '+l for l in loop_tail()]
    o+=['L_end:','  s_endpgm','.section .rodata,"a"','.p2align 6',f'.amdhsa_kernel {NAME}_kernel',
        '  .amdhsa_next_free_vgpr 256','  .amdhsa_next_free_sgpr 72','  .amdhsa_accum_offset 256','  .amdhsa_group_segment_fixed_size 0',
        '  .amdhsa_kernarg_size 72','  .amdhsa_user_sgpr_count 2','  .amdhsa_user_sgpr_kernarg_segment_ptr 1','  .amdhsa_system_sgpr_workgroup_id_x 1','.end_amdhsa_kernel','']
    open(path,'w').write('\n'.join(o))
    return seq

if __name__=='__main__':
    cfg=Cfg()
    seq=generate(cfg,'cdna_kernels/'+NAME+'.s')
```
